```python
import torch

def _softmax(x, axis=-1):
    return torch.softmax(x, dim=axis)
def _gelu(x):
    return torch.nn.functional.gelu(x, approximate="tanh")
def _silu(x):
    return torch.nn.functional.silu(x)
def _sigmoid(x):
    return torch.sigmoid(x)
def _layernorm(x, axis=-1, eps=1e-5):
    m = x.mean(dim=axis, keepdim=True)
    v = x.var(dim=axis, keepdim=True, unbiased=False)
    return (x - m) / torch.sqrt(v + eps)
def _scatter_add(tgt, idx, src, axis=0):
    return tgt.clone().index_add_(axis, idx, src)
def _segment_sum(src, seg, n):
    out = torch.zeros((n,) + src.shape[1:], dtype=src.dtype)
    return out.index_add_(0, seg, src)
def _pad(x, pw):
    flat = tuple(v for pair in reversed(pw) for v in pair)
    return torch.nn.functional.pad(x, flat)

kernel_name = 'concat_heads__softmax_full_mha__linear_attn_block__prompt'

def setup_inputs():

    _w = (lambda a: (lambda t: t.to(torch.bfloat16) if t.is_floating_point() else t)(torch.as_tensor(a)))
    def _A_setup():
        B, S, D = 1, 2048, 512
        return {
            "x": _w((lambda *s: torch.randn(*s, dtype=torch.bfloat16) * 0.2)(B, S, D)),
            "wqkv": _w((lambda *s: torch.randn(*s, dtype=torch.bfloat16) * 0.2)(D, 3 * D)),
            "wo": _w((lambda *s: torch.randn(*s, dtype=torch.bfloat16) * 0.05)(D, D)),
        }
    _A_in = _A_setup()

    def _B_setup():
        B, S, D = 1, 2048, 512
        return {
            "x": _w((lambda *s: torch.randn(*s, dtype=torch.bfloat16) * 0.05)(B, S, D)),
            "wqkv": _w((lambda *s: torch.randn(*s, dtype=torch.bfloat16) * 1.6)(D, 3 * D)),
            "wo": _w((lambda *s: torch.randn(*s, dtype=torch.bfloat16) * 0.05)(D, D)),
        }
    _B_in = _B_setup()

    return {
        "A_x": _A_in["x"],
        "A_wqkv": _A_in["wqkv"],
        "A_wo": _A_in["wo"],
        "B_x": _B_in["x"],
        "B_wqkv": _B_in["wqkv"],
        "B_wo": _B_in["wo"],
    }

def reference(A_x, A_wqkv, A_wo, B_x, B_wqkv, B_wo):
    def _A_ref(x, wqkv, wo):
        B, S, D = x.shape
        H = 32; Dh = D // H
        qkv = (lambda x, *d: x.permute(*d))((x @ wqkv).reshape(B, S, 3, H, Dh), 2, 0, 3, 1, 4)
        q, k, v = qkv[0], qkv[1], qkv[2]
        scale = Dh ** -0.5
        scores = torch.einsum("bhqd,bhkd->bhqk", q, k) * scale
        p = _softmax(scores, axis=-1)
        o = torch.einsum("bhqk,bhkd->bhqd", p, v)
        return (lambda x, *d: x.permute(*d))(o, 0, 2, 1, 3).reshape(B, S, D) @ wo

    def _B_ref(x, wqkv, wo):
        B, S, D = x.shape
        H = 32; Dh = D // H
        qkv = (lambda x, *d: x.permute(*d))((x @ wqkv).reshape(B, S, 3, H, Dh), 2, 0, 3, 1, 4)
        q, k, v = qkv[0], qkv[1], qkv[2]
        phi = lambda t: torch.where(t > 0, t + 1, torch.exp(t)) + 1e-6
        pq, pk = phi(q), phi(k)
        kv = torch.einsum("bhsd,bhse->bhde", pk, v)
        z = torch.einsum("bhsd->bhd", pk)
        num = torch.einsum("bhqd,bhde->bhqe", pq, kv)
        den = torch.einsum("bhqd,bhd->bhq", pq, z)[..., None] + 1e-6
        o = num / den
        return (lambda x, *d: x.permute(*d))(o, 0, 2, 1, 3).reshape(B, S, D) @ wo

    a = _A_ref(A_x, A_wqkv, A_wo)
    b = _B_ref(B_x, B_wqkv, B_wo)
    return torch.concatenate([a, b], axis=-1)
```

```python
class Asm:
    def __init__(self):
        self.L = []
        self.uid = 0
    def __call__(self, s=""):
        for line in s.split("\n"):
            line = line.strip()
            if not line:
                continue
            if line.endswith(":") or line.startswith(".") or line.startswith(";"):
                self.L.append(line)
            else:
                self.L.append("    " + line)
    def c(self, s):
        self.L.append("    ; " + s)
    def label(self, base):
        self.uid += 1
        return f"L{base}_{self.uid}"
    def text(self):
        return "\n".join(self.L) + "\n"

def v(a, n=1):
    return f"v{a}" if n == 1 else f"v[{a}:{a+n-1}]"
def s(a, n=1):
    return f"s{a}" if n == 1 else f"s[{a}:{a+n-1}]"
```

```python
import sys, math
sys.path.insert(0, "gen")
from asmb import Asm, v, s

NAME = "concat_heads__softmax_full_mha__linear_attn_block__prompt"
TS = "--ts" in sys.argv

WS_EPOCH = 0x0
WS_F1 = 0x10000
WS_F2 = 0x18000
WS_F3 = 0x20000
WS_F4 = 0x28000
WS_KVP = 0x40000
WS_Q = 0x100000
WS_K = 0x300000
WS_V = 0x500000
WS_OB = 0x700000
WS_OA = 0x900000
WS_TS = 0xB00000
WS_SIZE = 0xC00000
TAGC = 0x9E3779B1

TILE = 2112
LDS_TOTAL = 163840
CNT = 163584
SLOTA = [((3 - i) % 4) * 32768 for i in range(4)]
SLOTB = [134912, 106240, 77568]
RED = 143360
BOUNCE = 135168
OSH = 0

S_XA, S_WA, S_WOA, S_XB, S_WB, S_WOB, S_OUT, S_WS = 4, 8, 12, 16, 20, 24, 28, 32
S_TAG = 36
S_X, S_N7, S_N3 = 37, 38, 39
S_RTA, S_HQ, S_RTB, S_HP, S_H, S_QB, S_QT, S_CT = 40, 41, 42, 43, 44, 45, 46, 47
S_W = 3
T0, T1, T2, T3, T4, T5 = 48, 49, 50, 51, 52, 53
S_LOOP, S_SLOT, S_SPIN = 54, 55, 56
S_A, S_B, S_C = 57, 58, 59
S_TS = 64
SPIN_G = 400000
SPIN_L = 4000000

a = Asm()
nts = [0]
def ts(i):
    if TS:
        a(f"s_memtime {s(S_TS + 2 * i, 2)}")

def ts_dump(n):
    if not TS: return
    a("s_waitcnt lgkmcnt(0)")
    a(f"s_lshl_b32 {s(T0)}, s2, 3")
    a(f"v_lshrrev_b32 v2, 6, v0")
    a(f"v_add_u32 v2, {s(T0)}, v2")
    a(f"v_lshlrev_b32 v2, 6, v2")
    a(f"v_add_u32 v2, {WS_TS}, v2")
    for i in range(n):
        a(f"v_mov_b32 v3, {s(S_TS + 2 * i)}")
        a(f"buffer_store_dword v3, v2, {s(S_WS,4)}, 0 offen offset:{4*i}")

def srd(dst, lo, nbytes):
    a(f"s_mov_b32 {s(dst)}, {s(lo)}")
    a(f"s_mov_b32 {s(dst+1)}, {s(lo+1)}")
    a(f"s_mov_b32 {s(dst+2)}, {nbytes}")
    a(f"s_mov_b32 {s(dst+3)}, 0x20000")

def swbar(off, target_sgpr_or_imm, vaddr, vtmp, sleep=False):
    lw, ld = a.label("sw"), a.label("swd")
    a("s_mov_b64 exec, 1")
    a(f"v_mov_b32 {v(vtmp)}, 1")
    a(f"ds_add_u32 {v(vaddr)}, {v(vtmp)} offset:{off}")
    a("s_mov_b64 exec, -1")
    ldswait(off, target_sgpr_or_imm, vaddr, vtmp, sleep)

def ldswait(off, target, vaddr, vtmp, sleep=False):
    lw, ld = a.label("lw"), a.label("lwd")
    a(f"s_mov_b32 {s(S_SPIN)}, 0")
    a(f"{lw}:")
    a(f"ds_read_b32 {v(vtmp)}, {v(vaddr)} offset:{off}")
    a(f"s_add_u32 {s(S_SPIN)}, {s(S_SPIN)}, 1")
    a("s_waitcnt lgkmcnt(0)")
    a(f"v_readfirstlane_b32 {s(T5)}, {v(vtmp)}")
    a(f"s_cmp_ge_u32 {s(T5)}, {target}")
    a(f"s_cbranch_scc1 {ld}")
    if sleep:
        a("s_sleep 2")
    a(f"s_cmp_lt_u32 {s(S_SPIN)}, {SPIN_L}")
    a(f"s_cbranch_scc1 {lw}")
    a(f"{ld}:")

def gpoll(voff, soff, vtmp, sleep=0):
    lw, ld = a.label("gp"), a.label("gpd")
    a(f"s_mov_b32 {s(S_SPIN)}, 0")
    a(f"{lw}:")
    a(f"buffer_load_dword {v(vtmp)}, {v(voff)}, {s(S_WS,4)}, {soff} offen sc1")
    a(f"s_add_u32 {s(S_SPIN)}, {s(S_SPIN)}, 1")
    a("s_waitcnt vmcnt(0)")
    a(f"v_cmp_ne_u32 vcc, {s(S_TAG)}, {v(vtmp)}")
    a(f"s_cbranch_vccz {ld}")
    if sleep:
        a(f"s_sleep {sleep}")
    a(f"s_cmp_lt_u32 {s(S_SPIN)}, {SPIN_G}")
    a(f"s_cbranch_scc1 {lw}")
    a(f"{ld}:")

def flag_store(soff_sgpr, vtmp):
    a("s_mov_b64 exec, 1")
    a(f"v_mov_b32 {v(vtmp)}, 0")
    a(f"v_mov_b32 {v(vtmp+1)}, {s(S_TAG)}")
    a(f"buffer_store_dword {v(vtmp+1)}, {v(vtmp)}, {s(S_WS,4)}, {s(soff_sgpr)} offen sc1")
    a("s_mov_b64 exec, -1")

MF = "v_mfma_f32_32x32x16_bf16"
SM = "v_smfmac_f32_32x32x32_bf16"

XAD = [2, 3, 4, 5]; WAD = 6
XB_ = [40, 41, 42, 43]; WB_ = 44
FR = [8, 24]
ACC = [48, 64, 80]

def gemm_stage(kind):
    if kind == "A":
        wofs = lambda seg, t, j: 8192 + seg * 8192 + t * 2048 + j * 512
    else:
        wofs = lambda seg, t, j: 16384 + seg * 4096 + t * 1024 + j * 256
    def rdx(t): a(f"ds_read_b128 {v(FR[t%2],4)}, {v(XAD[t])}")
    def rdw(t, seg):
        for j in range(2):
            a(f"ds_read_b64_tr_b16 {v(FR[t%2]+4+4*seg+2*j,2)}, {v(WAD)} offset:{wofs(seg,t,j)}")
    def mm(t, seg):
        x = v(FR[t%2], 4); w = v(FR[t%2] + 4 + 4 * seg, 4); d = v(ACC[seg], 16)
        opt2 = (seg == 0) or (seg == 1 and kind == "A")
        if opt2: a(f"{MF} {d}, {w}, {x}, {d}")
        else: a(f"{MF} {d}, {x}, {w}, {d}")
    for t in range(4):
        a(f"v_add_u32 {v(XAD[t])}, {s(S_SLOT)}, {v(XB_[t])}")
    a(f"v_add_u32 {v(WAD)}, {s(S_SLOT)}, {v(WB_)}")
    rdx(0); rdw(0, 0); rdw(0, 1); rdw(0, 2)
    for t in range(4):
        last = t == 3
        a("s_waitcnt lgkmcnt(4)")
        mm(t, 0)
        if not last: rdx(t + 1); rdw(t + 1, 0)
        a(f"s_waitcnt lgkmcnt({2 if last else 5})")
        mm(t, 1)
        if not last: rdw(t + 1, 1)
        a(f"s_waitcnt lgkmcnt({0 if last else 5})")
        mm(t, 2)
        if not last: rdw(t + 1, 2)

def gemm_addr_setup(kind, rowbase_sgpr):
    a(f"v_and_b32 v8, 31, v1")
    a(f"v_lshlrev_b32 v9, 7, v8")
    a(f"v_add_u32 v9, {s(rowbase_sgpr)}, v9")
    a(f"v_bfe_u32 v10, v1, 1, 3")
    a(f"v_lshrrev_b32 v11, 5, v1")
    a(f"v_xor_b32 v10, v10, v11")
    for t in range(4):
        a(f"v_xor_b32 v12, {2*t}, v10")
        a(f"v_lshl_add_u32 {v(XB_[t])}, v12, 4, v9")
    a(f"v_bfe_u32 v12, v1, 2, 2")
    a(f"v_lshl_add_u32 v12, v11, 3, v12")
    a(f"v_bfe_u32 v13, v1, 4, 1")
    a(f"v_and_b32 v14, 3, v1")
    a(f"v_lshlrev_b32 v14, 3, v14")
    a(f"v_lshl_add_u32 v14, v13, 5, v14")
    if kind == "A":
        a(f"v_lshl_add_u32 v14, v12, 7, v14")
        a(f"v_bfe_u32 v13, v1, 3, 1")
        a(f"v_lshlrev_b32 v13, 6, v13")
        a(f"v_xor_b32 v13, {s(S_A)}, v13")
        a(f"v_add_u32 {v(WB_)}, v13, v14")
    else:
        a(f"v_lshl_add_u32 {v(WB_)}, v12, 6, v14")
    for i in range(48):
        a(f"v_mov_b32 {v(48+i)}, 0")

VX = [120, 121]; VWA = 122; VWB = 123; VCNT = 124; VT = 125
S_LX, S_LW = 60, 61
S_LXB, S_LWB = 62, 63
def dmaA(st):
    sl = SLOTA[st % 4]
    for q in range(2):
        a(f"s_add_u32 m0, {s(S_B)}, {sl + q*1024}")
        a(f"s_add_u32 {s(T0)}, {s(S_LX)}, {q*8192 + st*128}")
        a(f"buffer_load_dwordx4 {v(VX[q])}, {s(S_XA,4)}, {s(T0)} offen lds")
    for seg in range(3):
        for q in range(2):
            a(f"s_add_u32 m0, {s(S_B)}, {sl + 8192 + seg*8192 + q*1024}")
            a(f"s_add_u32 {s(T0)}, {s(S_LW)}, {(st*64 + q*8)*3072 + seg*1024}")
            a(f"buffer_load_dwordx4 {v(VWA)}, {s(S_WA,4)}, {s(T0)} offen lds")

def dmaB(slot_expr_sgpr=None, st=None):
    if st is not None:
        a(f"s_mov_b32 {s(T3)}, {SLOTB[st%3]}")
        a(f"s_mov_b32 {s(T1)}, {st*128}")
        a(f"s_mov_b32 {s(T2)}, {st*64*3072}")
    a(f"s_add_u32 {s(T1)}, {s(T1)}, {s(S_LXB)}")
    a(f"s_add_u32 {s(T2)}, {s(T2)}, {s(S_LWB)}")
    a(f"s_lshl_b32 {s(T4)}, {s(S_W)}, 12")
    a(f"s_add_u32 {s(T4)}, {s(T4)}, {s(T3)}")
    for q in range(4):
        a(f"s_add_u32 m0, {s(T4)}, {q*1024}")
        a(f"s_add_u32 {s(T0)}, {s(T1)}, {q*8192}")
        a(f"buffer_load_dwordx4 {v(VX[q%2])}, {s(S_XB,4)}, {s(T0)} offen lds")
    a(f"s_lshl_b32 {s(T4)}, {s(S_W)}, 10")
    a(f"s_add_u32 {s(T4)}, {s(T4)}, {s(T3)}")
    for seg in range(3):
        a(f"s_add_u32 m0, {s(T4)}, {16384 + seg*4096}")
        a(f"s_add_u32 {s(T0)}, {s(T2)}, {seg*1024}")
        a(f"buffer_load_dwordx4 {v(VWB)}, {s(S_WB,4)}, {s(T0)} offen lds")

def pack(dst, src, n):
    for i in range(n):
        a(f"v_cvt_pk_bf16_f32 {v(dst+i)}, {v(src+2*i)}, {v(src+2*i+1)}")

def prologue():
    a(f"s_cmp_ge_u32 s2, 256")
    a(f"s_cbranch_scc1 L_end")
    ts(0)
    a("s_load_dwordx16 s[64:79], s[0:1], 0" if not TS else "s_load_dwordx16 s[80:95], s[0:1], 0")
    a("s_load_dwordx2 s[96:97], s[0:1], 64")
    kb = 64 if not TS else 80
    a("v_and_b32 v1, 63, v0")
    a("v_lshrrev_b32 v2, 6, v0")
    a(f"s_and_b32 {s(S_X)}, s2, 7")
    a(f"v_readfirstlane_b32 {s(S_W)}, v2")
    a(f"s_lshr_b32 {s(T0)}, s2, 3")
    a(f"s_and_b32 {s(S_N7)}, {s(T0)}, 7")
    a(f"s_lshr_b32 {s(S_N3)}, {s(T0)}, 3")
    a(f"s_and_b32 {s(T0)}, {s(S_X)}, 3\ns_lshl_b32 {s(T0)}, {s(T0)}, 3\ns_add_u32 {s(S_RTA)}, {s(T0)}, {s(S_N7)}")
    a(f"s_lshr_b32 {s(T0)}, {s(S_X)}, 2\ns_lshl_b32 {s(T0)}, {s(T0)}, 2\ns_add_u32 {s(S_HQ)}, {s(T0)}, {s(S_N3)}")
    a(f"s_and_b32 {s(T0)}, {s(S_X)}, 1\ns_lshl_b32 {s(T0)}, {s(T0)}, 3\ns_add_u32 {s(S_RTB)}, {s(T0)}, {s(S_N7)}")
    a(f"s_lshr_b32 {s(T0)}, {s(S_X)}, 1\ns_lshl_b32 {s(T0)}, {s(T0)}, 2\ns_add_u32 {s(S_HP)}, {s(T0)}, {s(S_N3)}")
    a(f"s_lshl_b32 {s(T0)}, {s(S_X)}, 2\ns_add_u32 {s(S_H)}, {s(T0)}, {s(S_N3)}")
    a(f"s_mov_b32 {s(S_QB)}, {s(S_N7)}")
    a(f"s_lshl_b32 {s(T0)}, {s(S_X)}, 3\ns_add_u32 {s(S_QT)}, {s(T0)}, {s(S_N7)}")
    a(f"s_mov_b32 {s(S_CT)}, {s(S_N3)}")
    a("s_waitcnt lgkmcnt(0)")
    srd(S_XA, kb + 0, 0x200000); srd(S_WA, kb + 2, 0x180000); srd(S_WOA, kb + 4, 0x80000)
    srd(S_XB, kb + 6, 0x200000); srd(S_WB, kb + 8, 0x180000); srd(S_WOB, kb + 10, 0x80000)
    srd(S_OUT, kb + 12, 0x400000); srd(S_WS, 96, WS_SIZE)
    a(f"v_mov_b32 v2, 0")
    a(f"buffer_load_dword v7, v2, {s(S_WS,4)}, 0 offen sc1")
    a(f"s_cmp_ge_u32 {s(S_W)}, 4")
    a(f"s_cbranch_scc1 L_helper")

def awave():
    a.c("================= A waves: QKV_A, publish, attention =================")
    a(f"v_lshlrev_b32 v2, 2, v1")
    a(f"v_add_u32 v2, {CNT}, v2")
    a(f"v_mov_b32 v3, 0")
    a(f"v_cmp_eq_u32 vcc, 9, v1")
    a(f"v_cmp_eq_u32 {s(50,2)}, 16, v1")
    a(f"s_or_b64 vcc, vcc, {s(50,2)}")
    a(f"v_cndmask_b32_e64 v3, 0, 4, vcc")
    a(f"ds_write_b32 v2, v3")
    a(f"s_and_b32 {s(T0)}, {s(S_W)}, 1\ns_lshl_b32 {s(S_B)}, {s(T0)}, 12")
    a(f"s_lshr_b32 {s(T0)}, {s(S_W)}, 1\ns_lshl_b32 {s(S_A)}, {s(T0)}, 6")
    gemm_addr_setup("A", S_B)
    a("s_waitcnt vmcnt(0) lgkmcnt(0)")
    a(f"v_readfirstlane_b32 {s(S_TAG)}, v7")
    a(f"s_add_u32 {s(S_TAG)}, {s(S_TAG)}, {TAGC}")
    a(f"s_mov_b32 {s(S_LOOP)}, 0")
    a(f"s_mov_b32 {s(S_SLOT)}, {SLOTA[0]}")
    ts(1)
    a("LA_stage:")
    a("s_barrier")
    gemm_stage("A")
    a(f"s_sub_u32 {s(S_SLOT)}, {s(S_SLOT)}, 32768")
    a(f"s_and_b32 {s(S_SLOT)}, {s(S_SLOT)}, 0x1ffff")
    a(f"s_add_u32 {s(S_LOOP)}, {s(S_LOOP)}, 1")
    a(f"s_cmp_lt_u32 {s(S_LOOP)}, 8")
    a("s_cbranch_scc1 LA_stage")
    ts(2)
    a("s_setprio 3")
    a.c("epilogue: scale Q, pack, publish")
    a(f"s_lshl_b32 {s(T0)}, {s(S_HQ)}, 2\ns_lshr_b32 {s(T1)}, {s(S_W)}, 1\ns_lshl_b32 {s(T1)}, {s(T1)}, 1\ns_add_u32 {s(T0)}, {s(T0)}, {s(T1)}")
    a(f"s_lshl_b32 {s(T0)}, {s(T0)}, 16")
    a(f"s_lshl_b32 {s(T1)}, {s(S_RTA)}, 1\ns_and_b32 {s(T2)}, {s(S_W)}, 1\ns_add_u32 {s(T1)}, {s(T1)}, {s(T2)}\ns_lshl_b32 {s(T1)}, {s(T1)}, 10")
    a(f"s_add_u32 {s(T0)}, {s(T0)}, {s(T1)}")
    a(f"s_add_u32 {s(T1)}, {s(T0)}, {WS_K}\ns_add_u32 {s(T2)}, {s(T0)}, {WS_K + 65536}")
    a(f"s_add_u32 {s(T3)}, {s(T0)}, {WS_V}")
    a(f"s_add_u32 {s(T4)}, {s(T0)}, {WS_Q}\ns_add_u32 {s(T5)}, {s(T0)}, {WS_Q + 65536}")
    a(f"v_lshlrev_b32 v2, 4, v1")
    a(f"v_bfe_u32 v3, v1, 4, 1\nv_lshlrev_b32 v3, 16, v3\nv_lshrrev_b32 v4, 5, v1\nv_lshl_add_u32 v3, v4, 8, v3\nv_and_b32 v4, 15, v1\nv_lshl_add_u32 v3, v4, 4, v3")
    qs = 0.25 * math.log2(math.e)
    import struct
    a(f"s_mov_b32 {s(S_A)}, {struct.unpack('<I', struct.pack('<f', qs))[0]:#x}")
    a("s_nop 4")
    pack(8, 64, 8)
    a(f"buffer_store_dwordx4 v[8:11], v2, {s(S_WS,4)}, {s(T1)} offen sc1")
    a(f"buffer_store_dwordx4 v[12:15], v2, {s(S_WS,4)}, {s(T2)} offen sc1")
    pack(16, 80, 8)
    a("s_nop 1")
    a("v_permlane32_swap_b32 v16, v18\nv_permlane32_swap_b32 v17, v19\nv_permlane32_swap_b32 v20, v22\nv_permlane32_swap_b32 v21, v23")
    a(f"buffer_store_dwordx4 v[16:19], v3, {s(S_WS,4)}, {s(T3)} offen sc1")
    a(f"buffer_store_dwordx4 v[20:23], v3, {s(S_WS,4)}, {s(T3)} offen offset:512 sc1")
    for i in range(16):
        a(f"v_mul_f32 {v(48+i)}, {s(S_A)}, {v(48+i)}")
    pack(24, 48, 8)
    a(f"buffer_store_dwordx4 v[24:27], v2, {s(S_WS,4)}, {s(T4)} offen sc1")
    a(f"buffer_store_dwordx4 v[28:31], v2, {s(S_WS,4)}, {s(T5)} offen sc1")
    ts(3)
    a(f"v_mov_b32 v4, {CNT}")
    a(f"v_mov_b32 v5, 1")
    a(f"s_lshl_b32 {s(T0)}, {s(S_HQ)}, 5\ns_add_u32 {s(T0)}, {s(T0)}, {s(S_RTA)}\ns_lshl_b32 {s(T0)}, {s(T0)}, 7\ns_add_u32 {s(T0)}, {s(T0)}, {WS_F1}")
    a("s_waitcnt vmcnt(0)")
    ts(4)
    a("s_mov_b64 exec, 1")
    a("ds_add_rtn_u32 v6, v4, v5 offset:12")
    a("s_mov_b64 exec, -1")
    a("s_waitcnt lgkmcnt(0)")
    a(f"v_readfirstlane_b32 {s(T1)}, v6")
    a(f"s_cmp_lg_u32 {s(T1)}, 3")
    a("s_cbranch_scc1 LA_noflag")
    flag_store(T0, 6)
    a("LA_noflag:")
    a.c("poll S1: the 32 producers of head-quad h>>2")
    a(f"v_and_b32 v6, 31, v1\nv_lshlrev_b32 v6, 7, v6")
    a(f"s_lshr_b32 {s(T0)}, {s(S_H)}, 2\ns_lshl_b32 {s(T0)}, {s(T0)}, 12\ns_add_u32 {s(T0)}, {s(T0)}, {WS_F1}")
    gpoll(6, s(T0), 7)
    ts(5)
    a.c("load Q frags and K/V tiles 4w..4w+3 (chunks 0,1)")
    a(f"s_lshl_b32 {s(T0)}, {s(S_H)}, 16")
    a(f"s_lshl_b32 {s(T1)}, {s(S_W)}, 12\ns_add_u32 {s(T1)}, {s(T1)}, {s(T0)}")
    a(f"s_add_u32 {s(T2)}, {s(T1)}, {WS_V}\ns_add_u32 {s(T1)}, {s(T1)}, {WS_K}")
    a(f"s_lshl_b32 {s(T3)}, {s(S_QB)}, 13\ns_lshl_b32 {s(T4)}, {s(S_W)}, 11\ns_add_u32 {s(T3)}, {s(T3)}, {s(T4)}\ns_add_u32 {s(T3)}, {s(T3)}, {s(T0)}\ns_add_u32 {s(T3)}, {s(T3)}, {WS_Q}")
    for i in range(4):
        a(f"buffer_load_dwordx4 {v(32+8*i,4)}, v2, {s(S_WS,4)}, {s(T1)} offen offset:{1024*i} sc1")
        a(f"buffer_load_dwordx4 {v(36+8*i,4)}, v2, {s(S_WS,4)}, {s(T2)} offen offset:{1024*i} sc1")
    a(f"buffer_load_dwordx4 v[8:11], v2, {s(S_WS,4)}, {s(T3)} offen sc1")
    a(f"buffer_load_dwordx4 v[12:15], v2, {s(S_WS,4)}, {s(T3)} offen offset:1024 sc1")
    ldswait(12, 4, 4, 16)
    kv_lds_addr(64, 65, 66)
    a(f"s_mul_i32 {s(T0)}, {s(S_W)}, {4*TILE}")
    a(f"v_add_u32 v64, {s(T0)}, v64\nv_add_u32 v65, {s(T0)}, v65")
    a(f"v_and_b32 v67, 3, v1\nv_mul_u32_u24 v67, 272, v67\nv_bfe_u32 v68, v1, 2, 2\nv_mul_u32_u24 v68, {TILE}, v68\nv_add3_u32 v67, v67, v68, {s(T0)}")
    a(f"v_mov_b32 v68, 0x3f803f80\nv_mov_b32 v69, 0x3f803f80\nv_mov_b32 v70, 0x3f803f80\nv_mov_b32 v71, 0x3f803f80")
    a(f"ds_write_b128 v67, v[68:71] offset:{1024+256}")
    a(f"v_lshlrev_b32 v6, 4, v1")
    a(f"v_and_b32 v7, 31, v1")
    a(f"v_lshlrev_b32 v16, 4, v7")
    a(f"v_add_u32 v17, -20, v7")
    a(f"v_cmp_gt_u32 vcc, 8, v17")
    a(f"v_min_u32 v16, 256, v16")
    a(f"s_nop 0")
    a(f"v_cndmask_b32 v16, v16, 0, vcc" if False else f"v_cndmask_b32_e64 v16, v16, 0, vcc")
    a(f"v_lshrrev_b32 v17, 5, v1\nv_mul_u32_u24 v17, 272, v17\nv_add3_u32 v7, v16, v17, 1024" if False else
      f"v_lshrrev_b32 v17, 5, v1\nv_mul_u32_u24 v17, 272, v17\nv_add_u32 v7, v16, v17\nv_add_u32 v7, 1024, v7")
    a(f"v_mov_b32 v5, 0xdddddddd")
    for i in range(32):
        a(f"v_mov_b32 {v(80+i)}, 0")
    for i in range(4):
        a(f"s_waitcnt vmcnt({8 - 2*i})")
        a(f"ds_write_b128 v64, {v(32+8*i,4)} offset:{TILE*i}")
        a(f"ds_write_b128 v65, {v(36+8*i,4)} offset:{TILE*i}")
    a("s_waitcnt vmcnt(0) lgkmcnt(0)")
    ts(6)
    swbar(4, 4, 4, 16)
    ts(7)
    a("s_setprio 0")
    attention()
    a("s_setprio 3")
    ts(8)
    attn_epilogue()

def kv_lds_addr(vk, vv, vt):
    a(f"v_lshlrev_b32 {v(vk)}, 4, v1")
    a(f"v_lshrrev_b32 {v(vt)}, 4, v1")
    a(f"v_lshlrev_b32 {v(vt)}, 4, {v(vt)}")
    a(f"v_add3_u32 {v(vv)}, {v(vk)}, {v(vt)}, {s(S_K1024)}")

S_K1024 = 98
QF = [8, 12]; KB = [16, 20]; VBUF = [24, 32]; SB = [48, 64]; OACC = [80, 96]
def attention():
    a.c("================= attention main loop =================")
    nblk, ntile = 8, 2
    steps = [(n, t) for n in range(nblk) for t in range(ntile)]
    ns = len(steps)
    Kb = lambda n: KB[n % 2]
    Vb = lambda n, f: VBUF[n % 2] + 4 * f
    a(f"ds_read_b128 {v(Kb(0),4)}, v6")
    a(f"ds_read_b128 {v(Kb(1),4)}, v6 offset:{TILE}")
    a(f"ds_read_b128 {v(Vb(0,0),4)}, v7\nds_read_b128 {v(Vb(0,1),4)}, v7 offset:544")
    a(f"ds_read_b128 {v(Vb(1,1),4)}, v7 offset:544")
    for i in range(8):
        a(f"v_mov_b32 {v(SB[1]+8+i)}, 0")
    a(f"v_mov_b32 v3, {CNT + 36}")
    a(f"s_mov_b32 {s(S_LOOP)}, 0")
    a("s_waitcnt lgkmcnt(0)")
    a(f"{MF} {v(SB[0],16)}, {v(Kb(0),4)}, {v(QF[0],4)}, 0")
    a("s_nop 7\ns_nop 3")
    a(".p2align 4")
    a("LA_attn:")
    for si, (n, t) in enumerate(steps):
        X = SB[si % 2]; W = SB[(si + 1) % 2]
        pn, pt = steps[(si - 1) % ns]
        nn, nt = steps[(si + 1) % ns]
        pn_abs = n - 1 if t == 0 else n
        nn_abs = n + 1 if t == ntile - 1 else n
        e = lambda i: a(f"v_exp_f32 {v(X+i)}, {v(X+i)}")
        e(0); e(1)
        a(f"{SM} {v(OACC[pt],16)}, {v(Vb(pn,1),4)}, {v(W+8,8)}, v5")
        if nt == 0:
            a("s_waitcnt lgkmcnt(0)")
        if pt == ntile - 1:
            off = (pn_abs + 2) * TILE
            a(f"ds_read_b128 {v(Vb(pn,0),4)}, v7 offset:{off}")
            a(f"ds_read_b128 {v(Vb(pn,1),4)}, v7 offset:{off+544}")
        if si == 2:
            a(f"ds_read_b32 v2, v3")
        e(2); e(3); e(4); e(5)
        a(f"{MF} {v(W,16)}, {v(Kb(nn),4)}, {v(QF[nt],4)}, 0")
        if nt == ntile - 1:
            a(f"ds_read_b128 {v(Kb(nn),4)}, v6 offset:{(nn_abs+2)*TILE}")
        if si == 9:
            a(f"v_readfirstlane_b32 {s(T1)}, v2")
        e(6); e(7); e(8); e(9)
        a(f"{SM} {v(OACC[t],16)}, {v(Vb(n,0),4)}, {v(X,8)}, v5")
        if si == 9:
            a(f"s_cmp_lt_u32 {s(T1)}, 4")
            a(f"s_cbranch_scc1 LA_stall")
            a("LA_resume:")
        if si == ns - 1:
            a(f"s_add_u32 {s(S_LOOP)}, {s(S_LOOP)}, 1")
            a(f"s_cmp_lt_u32 {s(S_LOOP)}, 8")
        for i in range(10, 16): e(i)
        if si == ns - 1:
            a(f"v_add_u32 v6, {8*TILE}, v6")
            a(f"v_add_u32 v7, {8*TILE}, v7")
            a(f"v_add_u32 v3, 4, v3")
    a("s_cbranch_scc1 LA_attn")
    a("s_nop 1")
    a(f"{SM} {v(OACC[1],16)}, {v(Vb(7,1),4)}, {v(SB[1]+8,8)}, v5")

def attn_stall():
    a("LA_stall:")
    ldswait(0, 4, 3, 2)
    a("s_branch LA_resume")

def attn_epilogue():
    a.c("normalise, range check (fall back to true-max softmax when unsafe), publish O")
    a("s_waitcnt lgkmcnt(0)")
    a(f"s_mov_b32 {s(S_C)}, 0")
    a("s_nop 7\ns_nop 3")
    a("LA_fin:")
    a("s_mov_b32 exec_lo, 0")
    for t in range(2):
        a(f"v_mov_b32 {v(OACC[t]+8)}, {v(OACC[t]+12)}")
    a("s_mov_b32 exec_lo, -1")
    a(f"s_mov_b32 {s(T0)}, 0x21800000")
    a(f"s_mov_b32 {s(T1)}, 0x71800000")
    for t in range(2):
        O = OACC[t]
        a(f"v_rcp_f32 {v(O+9)}, {v(O+8)}")
        a(f"v_cmp_le_f32 vcc, {s(T0)}, {v(O+8)}")
        a(f"v_cmp_ge_f32 {s(50,2)}, {s(T1)}, {v(O+8)}")
        for i in range(8):
            a(f"v_mul_f32 {v(O+i)}, {v(O+i)}, {v(O+9)}")
        a(f"s_and_b64 {s(60+2*t,2)}, vcc, {s(50,2)}")
        a(f"v_add_f32 {v(O+10)}, {v(O)}, {v(O+1)}")
        for i in range(2, 8):
            a(f"v_add_f32 {v(O+10)}, {v(O+10)}, {v(O+i)}")
        a(f"v_cmp_class_f32 vcc, {v(O+10)}, {s(S_CLS)}")
        pack(16 + 4 * t, O, 4)
        a(f"s_andn2_b64 {s(60+2*t,2)}, {s(60+2*t,2)}, vcc")
    a(f"s_and_b64 {s(60,2)}, {s(60,2)}, {s(62,2)}")
    a(f"s_cmp_eq_u64 {s(60,2)}, -1")
    a(f"s_cbranch_scc1 LA_ok")
    a(f"s_cmp_eq_u32 {s(S_C)}, 0")
    a(f"s_cbranch_scc1 LA_fallback")
    a("LA_ok:")
    a(f"s_lshl_b32 {s(T0)}, {s(S_QB)}, 3\ns_lshl_b32 {s(T1)}, {s(S_W)}, 1\ns_add_u32 {s(T0)}, {s(T0)}, {s(T1)}\ns_lshl_b32 {s(T0)}, {s(T0)}, 15")
    a(f"s_lshl_b32 {s(T1)}, {s(S_H)}, 10\ns_add_u32 {s(T0)}, {s(T0)}, {s(T1)}\ns_add_u32 {s(T0)}, {s(T0)}, {WS_OA}\ns_add_u32 {s(T1)}, {s(T0)}, 32768")
    a(f"v_lshlrev_b32 v2, 4, v1")
    a(f"buffer_store_dwordx4 v[16:19], v2, {s(S_WS,4)}, {s(T0)} offen sc1")
    a(f"buffer_store_dwordx4 v[20:23], v2, {s(S_WS,4)}, {s(T1)} offen sc1")
    a(f"s_lshl_b32 {s(T0)}, {s(S_QB)}, 5\ns_add_u32 {s(T0)}, {s(T0)}, {s(S_H)}\ns_lshl_b32 {s(T0)}, {s(T0)}, 7\ns_add_u32 {s(T0)}, {s(T0)}, {WS_F4}")
    a(f"v_mov_b32 v5, 1")
    a("s_waitcnt vmcnt(0)")
    ts(9)
    a("s_mov_b64 exec, 1")
    a("ds_add_rtn_u32 v6, v4, v5 offset:16")
    a("s_mov_b64 exec, -1")
    a("s_waitcnt lgkmcnt(0)")
    a(f"v_readfirstlane_b32 {s(T1)}, v6")
    a(f"s_cmp_lg_u32 {s(T1)}, 3")
    a("s_cbranch_scc1 LA_noflag4")
    flag_store(T0, 6)
    a("LA_noflag4:")
    tail_load(0)
    ts(12)
    ts_dump(13)
    a("s_endpgm")

S_CLS = 99
def fallback():
    a.c("================= fallback: true row max, then a second pass =================")
    a("LA_fallback:")
    a(f"s_mov_b32 {s(S_C)}, 1")
    a(f"v_add_u32 v6, {-64*TILE & 0xffffffff}, v6")
    a(f"v_add_u32 v7, {-64*TILE & 0xffffffff}, v7")
    a(f"v_mov_b32 v112, 0xff800000\nv_mov_b32 v113, 0xff800000")
    a(f"v_mov_b32 v2, v6")
    a(f"s_mov_b32 {s(S_LOOP)}, 0")
    a("LF_max:")
    a(f"ds_read_b128 v[16:19], v2")
    a(f"v_add_u32 v2, {TILE}, v2")
    a("s_waitcnt lgkmcnt(0)")
    for t in range(2):
        a(f"{MF} {v(SB[t],16)}, v[16:19], {v(QF[t],4)}, 0")
    a("s_nop 7\ns_nop 7")
    for t in range(2):
        for i in range(8):
            a(f"v_max3_f32 {v(112+t)}, {v(112+t)}, {v(SB[t]+2*i)}, {v(SB[t]+2*i+1)}")
    a(f"s_add_u32 {s(S_LOOP)}, {s(S_LOOP)}, 1\ns_cmp_lt_u32 {s(S_LOOP)}, 64\ns_cbranch_scc1 LF_max")
    for t in range(2):
        a(f"v_mov_b32 v114, {v(112+t)}")
        a("s_nop 1")
        a(f"v_permlane32_swap_b32 v114, {v(112+t)}")
        a("s_nop 1")
        a(f"v_max_f32 v114, v114, {v(112+t)}")
        for i in range(16):
            a(f"v_sub_f32 {v(128+16*t+i)}, 0, v114")
    for i in range(32):
        a(f"v_mov_b32 {v(80+i)}, 0")
    a(f"s_mov_b32 {s(S_LOOP)}, 0")
    a("LF_pv:")
    a(f"ds_read_b128 v[16:19], v6\nds_read_b128 v[24:27], v7\nds_read_b128 v[28:31], v7 offset:544")
    a(f"v_add_u32 v6, {TILE}, v6\nv_add_u32 v7, {TILE}, v7")
    a("s_waitcnt lgkmcnt(0)")
    for t in range(2):
        a(f"{MF} {v(SB[t],16)}, v[16:19], {v(QF[t],4)}, {v(128+16*t,16)}")
    a("s_nop 7\ns_nop 7")
    for i in range(32):
        a(f"v_exp_f32 {v(48+i)}, {v(48+i)}")
    a("s_nop 1")
    for t in range(2):
        a(f"{SM} {v(OACC[t],16)}, v[24:27], {v(SB[t],8)}, v5")
        a(f"{SM} {v(OACC[t],16)}, v[28:31], {v(SB[t]+8,8)}, v5")
    a(f"s_add_u32 {s(S_LOOP)}, {s(S_LOOP)}, 1\ns_cmp_lt_u32 {s(S_LOOP)}, 64\ns_cbranch_scc1 LF_pv")
    a("s_nop 7\ns_nop 7")
    a("s_branch LA_fin")

def tail_load(role):
    a(f"v_and_b32 v6, 31, v1\nv_lshlrev_b32 v6, 7, v6")
    a(f"s_lshr_b32 {s(T0)}, {s(S_QT)}, 3\ns_lshl_b32 {s(T0)}, {s(T0)}, 12\ns_add_u32 {s(T0)}, {s(T0)}, {WS_F4}")
    gpoll(6, s(T0), 7, sleep=(0 if role == 0 else 4))
    ts(10)
    a(f"v_lshlrev_b32 v2, 4, v1")
    a(f"s_lshl_b32 {s(T1)}, {s(S_W)}, 12\ns_add_u32 {s(T1)}, {s(T1)}, {role*16384}")
    a(f"s_lshl_b32 {s(T0)}, {s(S_QT)}, 15\ns_add_u32 {s(T0)}, {s(T0)}, {s(T1)}\ns_add_u32 {s(T0)}, {s(T0)}, {WS_OA}")
    for i in range(4):
        a(f"buffer_load_dwordx4 {v(32+4*i,4)}, v2, {s(S_WS,4)}, {s(T0)} offen offset:{1024*i} sc1")
    a(f"v_add_u32 v3, {s(T1)}, v2")
    a("s_barrier")
    for i in range(4):
        a(f"s_waitcnt vmcnt({3-i})")
        a(f"ds_write_b128 v3, {v(32+4*i,4)} offset:{OSH + 1024*i}")
    a("s_waitcnt lgkmcnt(0)")
    ts(11)
    a("s_barrier")

WO = 128
def load_wo(srd_):
    a(f"v_lshrrev_b32 v2, 2, v1\nv_lshlrev_b32 v2, 10, v2\nv_and_b32 v3, 3, v1\nv_lshl_add_u32 v2, v3, 4, v2")
    a(f"s_lshl_b32 {s(T1)}, {s(S_CT)}, 8\ns_lshl_b32 {s(T2)}, {s(S_W)}, 6\ns_add_u32 {s(T1)}, {s(T1)}, {s(T2)}")
    a(f"s_mul_i32 {s(T2)}, {s(S_W)}, 6144\ns_add_u32 {s(T2)}, {s(T2)}, {BOUNCE}")
    a(f"v_lshrrev_b32 v3, 5, v1\nv_lshlrev_b32 v3, 2, v3\nv_bfe_u32 v8, v1, 2, 2\nv_add_u32 v3, v3, v8\nv_lshlrev_b32 v3, 6, v3")
    a(f"v_bfe_u32 v8, v1, 4, 1\nv_lshl_add_u32 v3, v8, 5, v3\nv_and_b32 v8, 3, v1\nv_lshl_add_u32 v3, v8, 3, v3\nv_add_u32 v3, {s(T2)}, v3")
    def dma(hd):
        a(f"s_add_u32 m0, {s(T2)}, {(hd%6)*1024}")
        a(f"s_add_u32 {s(T0)}, {s(T1)}, {hd*16384}")
        a(f"buffer_load_dwordx4 v2, {s(srd_,4)}, {s(T0)} offen lds")
    for hd in range(6): dma(hd)
    for p in range(16):
        left = min(32, 2 * p + 6) - (2 * p + 2)
        a(f"s_waitcnt vmcnt({left})")
        for hd in (2 * p, 2 * p + 1):
            for j in range(2):
                a(f"ds_read_b64_tr_b16 {v(WO+4*hd+2*j,2)}, v3 offset:{(hd%6)*1024 + j*512}")
        a("s_waitcnt lgkmcnt(0)")
        for hd in (2 * p + 6, 2 * p + 7):
            if hd < 32: dma(hd)

def out_store(colofs):
    a(f"v_and_b32 v2, 31, v1\nv_lshlrev_b32 v2, 11, v2\nv_lshrrev_b32 v3, 5, v1\nv_lshl_add_u32 v2, v3, 4, v2")
    a(f"s_lshl_b32 {s(T0)}, {s(S_QT)}, 16\ns_lshl_b32 {s(T1)}, {s(S_CT)}, 8\ns_add_u32 {s(T0)}, {s(T0)}, {s(T1)}\ns_lshl_b32 {s(T1)}, {s(S_W)}, 6\ns_add_u32 {s(T0)}, {s(T0)}, {s(T1)}")
    if colofs: a(f"s_add_u32 {s(T0)}, {s(T0)}, {colofs*2}")
    a("s_nop 7")
    pack(8, 48, 8)
    a("s_nop 1")
    a("v_permlane32_swap_b32 v8, v10\nv_permlane32_swap_b32 v9, v11\nv_permlane32_swap_b32 v12, v14\nv_permlane32_swap_b32 v13, v15")
    a(f"buffer_store_dwordx4 v[8:11], v2, {s(S_OUT,4)}, {s(T0)} offen")
    a(f"buffer_store_dwordx4 v[12:15], v2, {s(S_OUT,4)}, {s(T0)} offen offset:32")

PQ = 112
def phi(r, n):
    for i in range(n):
        a(f"v_min_f32 {v(8+i)}, 0, {v(r+i)}")
    for i in range(n):
        a(f"v_mul_f32 {v(8+i)}, {s(S_A)}, {v(8+i)}")
    for i in range(n):
        a(f"v_exp_f32 {v(8+i)}, {v(8+i)}")
    for i in range(n):
        a(f"v_max_f32 {v(r+i)}, 0, {v(r+i)}")
    for i in range(n):
        a(f"v_add_f32 {v(r+i)}, {v(r+i)}, {v(8+i)}")
    for i in range(n):
        a(f"v_add_f32 {v(r+i)}, {s(S_B)}, {v(r+i)}")

def helper():
    a.c("================= helper waves =================")
    a("L_helper:")
    a(f"s_sub_u32 {s(S_W)}, {s(S_W)}, 4")
    a(f"v_lshrrev_b32 v8, 3, v1")
    a(f"v_and_b32 v9, 7, v1")
    a(f"v_lshrrev_b32 v10, 4, v1")
    a(f"v_xor_b32 v11, v9, v10\nv_lshlrev_b32 v11, 4, v11\nv_lshl_add_u32 {v(VX[0])}, v8, 10, v11")
    a(f"v_xor_b32 {v(VX[1])}, 64, {v(VX[0])}")
    a(f"v_and_b32 v10, 1, v10\nv_lshlrev_b32 v10, 2, v10\nv_xor_b32 v11, v9, v10\nv_lshlrev_b32 v11, 4, v11")
    a(f"v_mul_u32_u24 v8, 3072, v8\nv_add_u32 {v(VWA)}, v8, v11")
    a(f"s_lshl_b32 {s(S_LX)}, {s(S_RTA)}, 16\ns_lshl_b32 {s(T0)}, {s(S_W)}, 14\ns_add_u32 {s(S_LX)}, {s(S_LX)}, {s(T0)}")
    a(f"s_mul_i32 {s(S_LW)}, {s(S_W)}, {16*3072}\ns_lshl_b32 {s(T0)}, {s(S_HQ)}, 7\ns_add_u32 {s(S_LW)}, {s(S_LW)}, {s(T0)}")
    a(f"s_lshl_b32 {s(S_B)}, {s(S_W)}, 11")
    for st in range(4): dmaA(st)
    ts(1)
    a(f"v_lshrrev_b32 v8, 2, v1\nv_mul_u32_u24 v8, 3072, v8\nv_and_b32 v9, 3, v1\nv_lshl_add_u32 {v(VWB)}, v9, 4, v8")
    a(f"s_lshl_b32 {s(S_LXB)}, {s(S_RTB)}, 17\ns_lshl_b32 {s(T0)}, {s(S_W)}, 15\ns_add_u32 {s(S_LXB)}, {s(S_LXB)}, {s(T0)}")
    a(f"s_mul_i32 {s(S_LWB)}, {s(S_W)}, {16*3072}\ns_lshl_b32 {s(T0)}, {s(S_HP)}, 6\ns_add_u32 {s(S_LWB)}, {s(S_LWB)}, {s(T0)}")
    a(f"v_mov_b32 {v(VCNT)}, {CNT}")
    a(f"s_lshl_b32 {s(S_C)}, {s(S_W)}, 12")
    gemm_addr_setup("B", S_C)
    waits = [24, 16, 16, 16, 16, 23, 22, 21]
    for st in range(8):
        a(f"s_waitcnt vmcnt({waits[st]})")
        if st == 0:
            a(f"v_readfirstlane_b32 {s(S_TAG)}, v7")
            a(f"s_add_u32 {s(S_TAG)}, {s(S_TAG)}, {TAGC}")
        a("s_barrier")
        if 1 <= st <= 4: dmaA(st + 3)
        if st == 4: dmaB(st=0)
        if st == 5: dmaB(st=1)
        if st == 6: dmaB(st=2)
    ts(2)
    a.c("QKV_B")
    a("s_setprio 2")
    a(f"s_mov_b32 {s(S_LOOP)}, 0")
    a(f"s_mov_b32 {s(S_SLOT)}, {SLOTB[0]}")
    a(f"s_mov_b32 {s(S_A)}, {SLOTB[1]}\ns_mov_b32 {s(S_B)}, {SLOTB[2]}")
    a("s_waitcnt vmcnt(14)")
    a("LB_stage:")
    a(f"s_lshl_b32 {s(S_C)}, {s(S_LOOP)}, 2\ns_add_u32 {s(S_C)}, {s(S_C)}, 4")
    swbar(0, s(S_C), VCNT, VT)
    a(f"s_sub_u32 {s(T0)}, {s(S_LOOP)}, 1\ns_cmp_ge_u32 {s(T0)}, 5\ns_cbranch_scc1 LB_nodma")
    a(f"s_mov_b32 {s(T3)}, {s(S_B)}")
    a(f"s_add_u32 {s(T0)}, {s(S_LOOP)}, 2\ns_lshl_b32 {s(T1)}, {s(T0)}, 7\ns_mul_i32 {s(T2)}, {s(T0)}, {64*3072}")
    dmaB()
    a("LB_nodma:")
    gemm_stage("B")
    a(f"s_mov_b32 {s(T0)}, {s(S_SLOT)}\ns_mov_b32 {s(S_SLOT)}, {s(S_A)}\ns_mov_b32 {s(S_A)}, {s(S_B)}\ns_mov_b32 {s(S_B)}, {s(T0)}")
    a(f"s_add_u32 {s(S_LOOP)}, {s(S_LOOP)}, 1")
    a(f"s_cmp_eq_u32 {s(S_LOOP)}, 7\ns_cbranch_scc1 LB_last")
    a("s_waitcnt vmcnt(7)")
    a(f"s_cmp_lt_u32 {s(S_LOOP)}, 8\ns_cbranch_scc1 LB_stage")
    a("s_branch LB_done")
    a("LB_last:")
    a("s_waitcnt vmcnt(0)")
    a("s_branch LB_stage")
    a("LB_done:")
    ts(3)
    a.c("B epilogue: phi, partial kv / z")
    import struct
    f2u = lambda x: struct.unpack('<I', struct.pack('<f', x))[0]
    a(f"s_mov_b32 {s(S_A)}, {f2u(math.log2(math.e)):#x}\ns_mov_b32 {s(S_B)}, {f2u(1e-6):#x}")
    a("s_nop 7")
    phi(64, 16)
    pack(24, 64, 8)
    pack(32, 80, 8)
    a(f"v_mov_b32 v40, 0x3f803f80\nv_mov_b32 v41, 0x3f803f80\nv_mov_b32 v42, 0x3f803f80\nv_mov_b32 v43, 0x3f803f80")
    a("s_nop 0")
    a(f"{MF} v[64:79], v[24:27], v[32:35], 0")
    a(f"{MF} v[80:95], v[24:27], v[40:43], 0")
    a(f"{MF} v[64:79], v[28:31], v[36:39], v[64:79]")
    a(f"{MF} v[80:95], v[28:31], v[40:43], v[80:95]")
    phi(48, 16)
    pack(PQ, 48, 8)
    a(f"s_mov_b32 exec_lo, 0xffff0000\ns_mov_b32 exec_hi, 0xffff0000")
    for i in range(8): a(f"v_mov_b32 {v(64+i)}, {v(80+i)}")
    a(f"s_mov_b32 exec_lo, 0x0000ffff\ns_mov_b32 exec_hi, 0x0000ffff")
    for i in range(8): a(f"v_mov_b32 {v(72+i)}, {v(88+i)}")
    a("s_mov_b64 exec, -1")
    a(f"v_lshlrev_b32 v2, 4, v1")
    a(f"s_lshl_b32 {s(T0)}, {s(S_W)}, 12\ns_add_u32 {s(T0)}, {s(T0)}, {RED}")
    a(f"v_add_u32 v3, {s(T0)}, v2")
    for i in range(4):
        a(f"ds_write_b128 v3, {v(64+4*i,4)} offset:{1024*i}")
    a("s_waitcnt lgkmcnt(0)")
    swbar(0, 36, VCNT, VT)
    a(f"s_cmp_ge_u32 {s(S_W)}, 2\ns_cbranch_scc1 LB_nored")
    a(f"s_lshl_b32 {s(T0)}, {s(S_W)}, 11\ns_add_u32 {s(T0)}, {s(T0)}, {RED}")
    a(f"v_add_u32 v3, {s(T0)}, v2")
    for w in range(4):
        for i in range(2):
            a(f"ds_read_b128 {v(64+8*w+4*i,4)}, v3 offset:{4096*w + 1024*i}")
    a("s_waitcnt lgkmcnt(0)")
    for i in range(8):
        a(f"v_add_f32 {v(64+i)}, {v(64+i)}, {v(72+i)}\nv_add_f32 {v(80+i)}, {v(80+i)}, {v(88+i)}")
    for i in range(8):
        a(f"v_add_f32 {v(64+i)}, {v(64+i)}, {v(80+i)}")
    pack(8, 64, 4)
    a(f"s_lshl_b32 {s(T0)}, {s(S_HP)}, 4\ns_add_u32 {s(T0)}, {s(T0)}, {s(S_RTB)}\ns_lshl_b32 {s(T1)}, {s(T0)}, 11\ns_lshl_b32 {s(T2)}, {s(S_W)}, 10\ns_add_u32 {s(T1)}, {s(T1)}, {s(T2)}\ns_add_u32 {s(T1)}, {s(T1)}, {WS_KVP}")
    a(f"buffer_store_dwordx4 v[8:11], v2, {s(S_WS,4)}, {s(T1)} offen sc1")
    a(f"s_lshl_b32 {s(T0)}, {s(T0)}, 7\ns_lshl_b32 {s(T2)}, {s(S_W)}, 2\ns_add_u32 {s(T0)}, {s(T0)}, {s(T2)}\ns_add_u32 {s(T0)}, {s(T0)}, {WS_F2}")
    a("s_waitcnt vmcnt(0)")
    flag_store(T0, 8)
    a("LB_nored:")
    ts(4)
    a.c("stage K/V chunks 2..7 (S1 was observed by the A waves: counter +4)")
    ldswait(4, 4, VCNT, VT, sleep=True)
    swbar(0, 40, VCNT, VT)
    kv_lds_addr(4, 5, 6)
    a(f"s_mul_i32 {s(T0)}, {s(S_W)}, {2*TILE}")
    a(f"v_add_u32 v4, {s(T0)}, v4\nv_add_u32 v5, {s(T0)}, v5")
    a(f"v_and_b32 v6, 3, v1\nv_mul_u32_u24 v6, 272, v6\nv_bfe_u32 v7, v1, 2, 1\nv_mul_u32_u24 v7, {TILE}, v7\nv_add3_u32 v6, v6, v7, {s(T0)}")
    a(f"v_add_u32 v4, {16*TILE}, v4\nv_add_u32 v5, {16*TILE}, v5\nv_add_u32 v6, {16*TILE + 1024 + 256}, v6")
    a(f"s_lshl_b32 {s(T0)}, {s(S_H)}, 16\ns_lshl_b32 {s(T1)}, {s(S_W)}, 11\ns_add_u32 {s(T0)}, {s(T0)}, {s(T1)}")
    a(f"s_add_u32 {s(T1)}, {s(T0)}, {WS_K + 16384}\ns_add_u32 {s(T2)}, {s(T0)}, {WS_V + 16384}")
    for c in range(6):
        for i in range(2):
            a(f"buffer_load_dwordx4 {v(128+16*c+8*i,4)}, v2, {s(S_WS,4)}, {s(T1)} offen offset:{1024*i} sc1")
            a(f"buffer_load_dwordx4 {v(132+16*c+8*i,4)}, v2, {s(S_WS,4)}, {s(T2)} offen offset:{1024*i} sc1")
        if c < 5:
            a(f"s_add_u32 {s(T1)}, {s(T1)}, 8192\ns_add_u32 {s(T2)}, {s(T2)}, 8192")
    a(f"v_mov_b32 v8, 1")
    for c in range(6):
        base = (c % 3) * 8 * TILE
        if c == 3:
            a(f"v_add_u32 v4, {24*TILE}, v4\nv_add_u32 v5, {24*TILE}, v5\nv_add_u32 v6, {24*TILE}, v6")
        a(f"ds_write_b128 v6, v[40:43] offset:{base}")
        a(f"s_waitcnt vmcnt({20 - 4*c})")
        for i in range(2):
            a(f"ds_write_b128 v4, {v(128+16*c+8*i,4)} offset:{base + TILE*i}")
            a(f"ds_write_b128 v5, {v(132+16*c+8*i,4)} offset:{base + TILE*i}")
        a("s_waitcnt lgkmcnt(0)")
        a("s_mov_b64 exec, 1")
        a(f"ds_add_u32 {v(VCNT)}, v8 offset:{32 + 4*(c+2)}")
        a("s_mov_b64 exec, -1")
    ts(5)
    a.c("B2: o_B = (pq kv) / (pq z + eps)")
    a(f"v_and_b32 v6, 15, v1\nv_lshlrev_b32 v6, 7, v6\nv_bfe_u32 v7, v1, 4, 1\nv_lshl_add_u32 v6, v7, 2, v6")
    a(f"s_lshl_b32 {s(T0)}, {s(S_HP)}, 11\ns_add_u32 {s(T0)}, {s(T0)}, {WS_F2}")
    gpoll(6, s(T0), 7, sleep=4)
    a(f"s_lshl_b32 {s(T0)}, {s(S_HP)}, 15\ns_add_u32 {s(T0)}, {s(T0)}, {WS_KVP}")
    for p in range(32):
        a(f"buffer_load_dwordx4 {v(128+4*p,4)}, v2, {s(S_WS,4)}, {s(T0)} offen offset:{1024*(p%4)} sc1")
        if p % 4 == 3 and p < 31: a(f"s_add_u32 {s(T0)}, {s(T0)}, 4096")
    for p in range(32):
        if p % 4 == 0: a(f"s_waitcnt vmcnt({28 - p})")
        d = v(48 + 16 * (p % 2), 16)
        a(f"{MF} {d}, {v(128+4*p,4)}, {v(PQ+4*(p%2),4)}, {'0' if p < 2 else d}")
    a(f"s_lshl_b32 {s(T0)}, {s(S_RTB)}, 2\ns_add_u32 {s(T0)}, {s(T0)}, {s(S_W)}\ns_lshl_b32 {s(T0)}, {s(T0)}, 15\ns_lshl_b32 {s(T1)}, {s(S_HP)}, 11\ns_add_u32 {s(T0)}, {s(T0)}, {s(T1)}\ns_add_u32 {s(T0)}, {s(T0)}, {WS_OB}")
    a("s_nop 7\ns_nop 3")
    a(f"v_add_f32 v8, {s(S_B)}, v56\nv_add_f32 v9, {s(S_B)}, v64")
    a("v_rcp_f32 v8, v8\nv_rcp_f32 v9, v9\ns_nop 0")
    for i in range(8):
        a(f"v_mul_f32 {v(48+i)}, {v(48+i)}, v8")
    for i in range(8):
        a(f"v_mul_f32 {v(72+i)}, {v(72+i)}, v9")
    pack(16, 48, 4); pack(20, 72, 4)
    a(f"buffer_store_dwordx4 v[16:19], v2, {s(S_WS,4)}, {s(T0)} offen sc1")
    a(f"buffer_store_dwordx4 v[20:23], v2, {s(S_WS,4)}, {s(T0)} offen offset:1024 sc1")
    a(f"s_lshl_b32 {s(T0)}, {s(S_RTB)}, 4\ns_add_u32 {s(T0)}, {s(T0)}, {s(S_HP)}\ns_lshl_b32 {s(T0)}, {s(T0)}, 7\ns_lshl_b32 {s(T1)}, {s(S_W)}, 2\ns_add_u32 {s(T0)}, {s(T0)}, {s(T1)}\ns_add_u32 {s(T0)}, {s(T0)}, {WS_F3}")
    a("s_waitcnt vmcnt(0)")
    flag_store(T0, 8)
    ts(6)
    load_wo(S_WOB)
    ts(7)
    a.c("B3: out_B tile")
    a(f"v_and_b32 v6, 15, v1\nv_lshlrev_b32 v6, 7, v6")
    a(f"s_lshr_b32 {s(T0)}, {s(S_QT)}, 2\ns_lshl_b32 {s(T0)}, {s(T0)}, 11\ns_and_b32 {s(T1)}, {s(S_QT)}, 3\ns_lshl_b32 {s(T1)}, {s(T1)}, 2\ns_add_u32 {s(T0)}, {s(T0)}, {s(T1)}\ns_add_u32 {s(T0)}, {s(T0)}, {WS_F3}")
    gpoll(6, s(T0), 7, sleep=4)
    a(f"v_lshlrev_b32 v2, 4, v1")
    a(f"s_lshl_b32 {s(T0)}, {s(S_QT)}, 15\ns_add_u32 {s(T0)}, {s(T0)}, {WS_OB}")
    for half in range(2):
        for p in range(16):
            a(f"buffer_load_dwordx4 {v(64+4*(p%12) if False else (8+4*p if p < 10 else 64+4*(p-10)),4)}, v2, {s(S_WS,4)}, {s(T0)} offen offset:{1024*(p%4)} sc1")
            if p % 4 == 3: a(f"s_add_u32 {s(T0)}, {s(T0)}, 4096")
        for p in range(16):
            if p % 4 == 0: a(f"s_waitcnt vmcnt({12 - p})")
            r = 8 + 4 * p if p < 10 else 64 + 4 * (p - 10)
            hd = half * 16 + p
            a(f"{MF} v[48:63], {v(WO+4*hd,4)}, {v(r,4)}, {'0' if hd == 0 else 'v[48:63]'}")
    out_store(512)
    ts(8)
    load_wo(S_WOA)
    ts(9)
    tail_load(1)
    a(f"v_lshlrev_b32 v2, 4, v1")
    regs = [8 + 4 * p for p in range(8)]
    for p in range(8):
        a(f"ds_read_b128 {v(regs[p],4)}, v2 offset:{OSH + 1024*p}")
    for hd in range(32):
        a(f"s_waitcnt lgkmcnt({min(7, 31-hd)})")
        a(f"{MF} v[48:63], {v(WO+4*hd,4)}, {v(regs[hd%8],4)}, {'0' if hd == 0 else 'v[48:63]'}")
        if hd + 8 < 32:
            a(f"ds_read_b128 {v(regs[hd%8],4)}, v2 offset:{OSH + 1024*(hd+8)}")
    out_store(0)
    a(f"s_or_b32 {s(T0)}, s2, {s(S_W)}")
    a(f"s_cmp_lg_u32 {s(T0)}, 0")
    a("s_cbranch_scc1 LB_end")
    a(f"s_mov_b32 {s(T0)}, {WS_EPOCH}")
    flag_store(T0, 16)
    a("LB_end:")
    ts(12)
    ts_dump(13)

HEADER = open("cdna_kernels/" + NAME + ".s.ref").read().split("; Override")[0]

def main():
    prologue_text = Asm()
    a(f"{NAME}_kernel:")
    a(f"s_mov_b32 {s(S_K1024)}, 1024")
    a(f"s_mov_b32 {s(S_CLS)}, 0x207")
    prologue()
    awave()
    attn_stall()
    fallback()
    helper()
    a("L_end:")
    a("s_endpgm")
    out = HEADER + f"; @launch grid=(256,1,1) block=(512,1,1) lds={LDS_TOTAL}\n"
    out += f""".amdgcn_target "amdgcn-amd-amdhsa--gfx950"
.text
.globl {NAME}_kernel
.p2align 8
.type {NAME}_kernel,@function
""" + a.text() + f""".section .rodata,"a"
.p2align 6
.amdhsa_kernel {NAME}_kernel
  .amdhsa_next_free_vgpr 256
  .amdhsa_next_free_sgpr 102
  .amdhsa_accum_offset 256
  .amdhsa_group_segment_fixed_size 0
  .amdhsa_kernarg_size 72
  .amdhsa_user_sgpr_count 2
  .amdhsa_user_sgpr_kernarg_segment_ptr 1
  .amdhsa_system_sgpr_workgroup_id_x 1
.end_amdhsa_kernel
"""
    dst = [x for x in sys.argv[1:] if not x.startswith("--")]
    path = dst[0] if dst else f"cdna_kernels/{NAME}.s"
    open(path, "w").write(out)

main()
```

```python
from kb import *
import mb3, mb5
def body(name, pre, loop, iters):
    return f"""
    s_load_dwordx2 s[4:5], s[0:1], 0
    v_lshrrev_b32 v1, 6, v0
    s_nop 1
    v_readfirstlane_b32 s6, v1
    s_waitcnt lgkmcnt(0)
    s_mov_b32 s8, s4
    s_mov_b32 s9, s5
    s_mov_b32 s10, 0x100000
    s_mov_b32 s11, 0x00020000
{pre}
    s_mov_b32 s20, {iters}
    s_barrier
    s_memtime s[12:13]
    s_memrealtime s[16:17]
    s_waitcnt lgkmcnt(0)
.p2align 6
L_{name}:
{loop}
    s_sub_u32 s20, s20, 1
    s_cmp_lg_u32 s20, 0
    s_cbranch_scc1 L_{name}
    s_memtime s[14:15]
    s_memrealtime s[18:19]
    s_waitcnt lgkmcnt(0)
    s_sub_u32 s14, s14, s12
    s_sub_u32 s18, s18, s16
    s_lshl_b32 s3, s2, 4
    s_add_u32 s3, s3, s6
    s_lshl_b32 s3, s3, 3
    v_mov_b32 v2, s3
    v_mov_b32 v4, s14
    v_mov_b32 v5, s18
    buffer_store_dwordx2 v[4:5], v2, s[8:11], 0 offen
    s_waitcnt vmcnt(0)
"""
K = []
K.append(("c_nop", body("c_nop", "", "\n".join(["s_nop 15"] * 16), 200), 128, 0))
K.append(("c_exp", body("c_exp", "\n".join(f"v_mov_b32 v{8+i}, 0.5" for i in range(32)), "\n".join(f"v_exp_f32 v{40+i}, v{8+i}" for i in range(32)), 200), 128, 0))
K.append(("c_attn", body("c_attn", mb3.pre(2).replace("NAME", "c_attn"), mb5.body(2, 8, "base_w"), 8), 128, 140 * 1024))
K.append(("c_attn10", body("c_attn10", mb3.pre(2).replace("NAME", "c_attn10"), mb5.body(2, 8, "base_w"), 80), 128, 140 * 1024))
assemble(wrap(K, 1), "clk")
if __name__ == "__main__" and os.path.exists("/dev/kfd"):
    import cdna_launch as cl, time
    out = cl.DeviceBuffer(1 << 20); big = cl.DeviceBuffer(512 << 20)
    for n, _, _, _ in K:
        k = cl.AsmKernel("clk.co", n, check=False)
        for mode in ("idle", "idle", "memset", "memset", "b2b"):
            if mode == "idle": time.sleep(0.05)
            if mode == "memset":
                cl._check(cl._hip.hipMemset(ctypes.c_void_p(big.ptr), 1, 512 << 20)); cl._check(cl._hip.hipDeviceSynchronize())
            for r in range(50 if mode == "b2b" else 1):
                k.launch((256, 1, 1), (256, 1, 1), struct.pack("<Q", out.ptr))
            cl._check(cl._hip.hipDeviceSynchronize())
            o = out.to_numpy(np.uint32, (256, 16, 2)).astype(np.float64)[:, :4]
            print(n, mode, "cycles", int(np.median(o[:, :, 0])), "GHz", round(float(np.median(o[:, :, 0] / o[:, :, 1] / 10)), 3))
        k.unload()
```

```python
from kb import *
import mb3, mb5, clk
VB = 65536
def pre(name, junk):
    p = mb3.pre(2).replace("NAME", name)
    val = {"ones": "0x3f803f80", "zero": "0", "dup": None, "real": "0x3f803f80"}[junk]
    extra = []
    if val is not None:
        extra.append("    v_and_b32 v40, 3, v0\n    v_mul_u32_u24 v40, 272, v40\n    v_lshrrev_b32 v41, 2, v0\n    v_mul_u32_u24 v41, 1088, v41\n    v_add_u32 v40, v40, v41")
        extra.append(f"    v_add_u32 v40, {VB+256}, v40\n    v_mov_b32 v44, {val}\n    v_mov_b32 v45, {val}\n    v_mov_b32 v46, {val}\n    v_mov_b32 v47, {val}\n    ds_write_b128 v40, v[44:47]\n    s_waitcnt lgkmcnt(0)\n    s_barrier")
        extra.append(f"    v_and_b32 v41, 31, v1\n    v_lshlrev_b32 v41, 4, v41\n    v_min_u32 v41, 256, v41")
        if junk == "real":
            extra.append("    v_and_b32 v42, 31, v1\n    v_add_u32 v42, -20, v42\n    v_cmp_gt_u32 vcc, 8, v42\n    s_nop 1\n    v_cndmask_b32_e64 v41, v41, 0, vcc")
        extra.append(f"    v_lshrrev_b32 v42, 5, v1\n    v_mul_u32_u24 v42, 272, v42\n    v_add_u32 v7, v41, v42\n    v_add_u32 v7, {VB}, v7")
    return p + "\n" + "\n".join(extra)
def strip(body, pat):
    return "\n".join(l for l in body.split("\n") if pat not in l)
base = mb5.body(2, 8, "base_w")
K = []
IT = 16
for junk in ("dup", "real", "ones", "zero"):
    n = "a_" + junk
    K.append((n, clk.body(n, pre(n, junk), base, IT), 128, 140 * 1024))
K.append(("a_nosm", clk.body("a_nosm", pre("a_nosm", "real"), strip(base, "smfmac"), IT), 128, 140 * 1024))
K.append(("a_noqk", clk.body("a_noqk", pre("a_noqk", "real"), strip(base, "v_mfma"), IT), 128, 140 * 1024))
K.append(("a_noexp", clk.body("a_noexp", pre("a_noexp", "real"), strip(base, "v_exp"), IT), 128, 140 * 1024))
K.append(("a_nolds", clk.body("a_nolds", pre("a_nolds", "real"), strip(base, "ds_read"), IT), 128, 140 * 1024))
def dense():
    L = []
    for l in base.split("\n"):
        if "smfmac" in l:
            import re
            m = re.match(r"\s*v_smfmac_f32_32x32x32_bf16 (v\[\d+:\d+\]), (v\[\d+:\d+\]), v\[(\d+):(\d+)\], v5", l)
            d, aa, b0 = m.group(1), m.group(2), int(m.group(3))
            for i in range(4):
                L.append(f"    v_cvt_pk_bf16_f32 v{112+i}, v{b0+2*i}, v{b0+2*i+1}")
            L.append("    s_nop 1")
            L.append(f"    v_mfma_f32_32x32x16_bf16 {d}, {aa}, v[112:115], {d}")
        else:
            L.append(l)
    return "\n".join(L)
K.append(("a_dense", clk.body("a_dense", pre("a_dense", "real"), dense(), IT), 128, 140 * 1024))
K.append(("a_densez", clk.body("a_densez", pre("a_densez", "zero"), dense(), IT), 128, 140 * 1024))
assemble(wrap(K, 1), "clk2")
if __name__ == "__main__" and os.path.exists("/dev/kfd"):
    import cdna_launch as cl, time
    out = cl.DeviceBuffer(1 << 20)
    for n, _, _, _ in K:
        k = cl.AsmKernel("clk2.co", n, check=False)
        r = []
        for rep in range(4):
            time.sleep(0.02)
            k.launch((256, 1, 1), (256, 1, 1), struct.pack("<Q", out.ptr))
            cl._check(cl._hip.hipDeviceSynchronize())
            o = out.to_numpy(np.uint32, (256, 16, 2)).astype(np.float64)[:, :4]
            r.append(f"{np.median(o[:,:,0])/IT/16:.1f}cyc {np.median(o[:, :, 0] / o[:, :, 1] / 10):.3f}GHz {np.median(o[:,:,1])*10/IT/16:.1f}ns")
        print(n, r)
        k.unload()
```

```python
import sys
sys.path.insert(0, "bench")
from mb import *
T = []
def rep(f, n): return "\n".join(f(i) for i in range(n))

VB = 65536
def pre(ntile):
    L = []
    L.append("    v_lshlrev_b32 v2, 2, v0")
    L.append("    s_mov_b32 s30, 0x9E3779B1")
    L.append("    v_mul_lo_u32 v3, v0, s30")
    L.append("    s_mov_b32 s31, 0")
    L.append("LF_%s:" % "NAME")
    L.append("    v_mul_lo_u32 v3, v3, s30")
    L.append("    v_add_u32 v3, 12345, v3")
    L.append("    v_and_b32 v4, 0x807f807f, v3")
    L.append("    v_or_b32 v4, 0x3f003f00, v4")
    L.append("    ds_write_b32 v2, v4")
    L.append("    v_add_u32 v2, 1024, v2")
    L.append("    s_add_u32 s31, s31, 1")
    L.append("    s_cmp_lt_u32 s31, 140")
    L.append("    s_cbranch_scc1 LF_NAME")
    L.append("    s_waitcnt lgkmcnt(0)")
    L.append("    s_barrier")
    L.append("    v_and_b32 v1, 63, v0")
    L.append("    v_lshlrev_b32 v6, 4, v1")
    L.append("    v_and_b32 v7, 15, v1")
    L.append("    v_lshlrev_b32 v7, 4, v7")
    L.append("    v_lshrrev_b32 v2, 5, v1")
    L.append("    v_mul_u32_u24 v2, 272, v2")
    L.append("    v_add_u32 v7, v7, v2")
    L.append(f"    v_add_u32 v7, {VB}, v7")
    L.append("    v_mov_b32 v5, 0xdddddddd")
    for t in range(ntile):
        L.append(f"    ds_read_b128 v[{8+4*t}:{11+4*t}], v6 offset:{t*1024+2048}")
    for i in range(16*ntile):
        L.append(f"    v_mov_b32 v{80+i}, 0")
    for i in range(32):
        L.append(f"    v_mov_b32 v{48+i}, 0")
    L.append("    ds_read_b128 v[16:19], v6")
    L.append("    ds_read_b128 v[20:23], v6")
    for i in range(4):
        L.append(f"    ds_read_b128 v[{24+4*i}:{27+4*i}], v7")
    L.append("    s_waitcnt lgkmcnt(0)")
    return "\n".join(L)

def body(ntile, nblk, reads=True):
    L = []
    steps = [(n, t) for n in range(nblk) for t in range(ntile)]
    ns = len(steps)
    assert ns % 2 == 0
    for s, (n, t) in enumerate(steps):
        X = 48 + 16 * (s % 2)
        W = 48 + 16 * ((s + 1) % 2)
        pn, pt = steps[(s - 1) % ns]
        nn, nt = steps[(s + 1) % ns]
        Kb = lambda n: 16 + 4 * (n % 2)
        Vb = lambda n, f: 24 + 8 * (n % 2) + 4 * f
        e = lambda i: L.append(f"    v_exp_f32 v{X+i}, v{X+i}")
        e(0); e(1)
        L.append(f"    v_smfmac_f32_32x32x32_bf16 v[{80+16*pt}:{95+16*pt}], v[{Vb(pn,1)}:{Vb(pn,1)+3}], v[{W+8}:{W+15}], v5")
        if reads and pt == ntile - 1:
            off = ((pn + 2) % nblk)
            L.append(f"    ds_read_b128 v[{Vb(pn,0)}:{Vb(pn,0)+3}], v7 offset:{off*1088}")
            L.append(f"    ds_read_b128 v[{Vb(pn,1)}:{Vb(pn,1)+3}], v7 offset:{off*1088+544}")
        e(2); e(3); e(4); e(5)
        if reads and nt == 0:
            L.append("    s_waitcnt lgkmcnt(2)" if pt == ntile - 1 else "    s_waitcnt lgkmcnt(0)")
        L.append(f"    v_mfma_f32_32x32x16_bf16 v[{W}:{W+15}], v[{Kb(nn)}:{Kb(nn)+3}], v[{8+4*nt}:{11+4*nt}], 0")
        if reads and nt == ntile - 1:
            off = ((nn + 2) % nblk)
            L.append(f"    ds_read_b128 v[{Kb(nn)}:{Kb(nn)+3}], v6 offset:{off*1024}")
        e(6); e(7); e(8); e(9)
        L.append(f"    v_smfmac_f32_32x32x32_bf16 v[{80+16*t}:{95+16*t}], v[{Vb(n,0)}:{Vb(n,0)+3}], v[{X}:{X+7}], v5")
        for i in range(10, 16): e(i)
    return "\n".join(L)

for ntile in (1, 2):
    for nblk in (4, 8):
        for reads in (True, False):
            name = f"at_t{ntile}_b{nblk}_r{int(reads)}"
            T.append(dict(name=name, body=body(ntile, nblk, reads), pre=pre(ntile).replace("NAME", name), iters=64, unroll=1, lds=140*1024, div=nblk*ntile, blocks=(256, 512, 1024)))
if __name__ == "__main__":
    build(T, "mb3")
    if os.path.exists("/dev/kfd"):
        for t in T: t['unroll'] = t['div']
        run(T, "mb3")
```

```python
import sys
sys.path.insert(0, "bench")
from mb import *
import mb3
T = []
def body(ntile, nblk, variant):
    L = []
    steps = [(n, t) for n in range(nblk) for t in range(ntile)]
    ns = len(steps)
    for s, (n, t) in enumerate(steps):
        X = 48 + 16 * (s % 2)
        W = 48 + 16 * ((s + 1) % 2)
        pn, pt = steps[(s - 1) % ns]
        nn, nt = steps[(s + 1) % ns]
        Kb = lambda n: 16 + 4 * (n % 2)
        Vb = lambda n, f: 24 + 8 * (n % 2) + 4 * f
        e = lambda i: L.append(f"    v_exp_f32 v{X+i}, v{X+i}")
        sm1 = f"    v_smfmac_f32_32x32x32_bf16 v[{80+16*pt}:{95+16*pt}], v[{Vb(pn,1)}:{Vb(pn,1)+3}], v[{W+8}:{W+15}], v5"
        sm0p = f"    v_smfmac_f32_32x32x32_bf16 v[{80+16*pt}:{95+16*pt}], v[{Vb(pn,0)}:{Vb(pn,0)+3}], v[{W}:{W+7}], v5"
        qk = f"    v_mfma_f32_32x32x16_bf16 v[{W}:{W+15}], v[{Kb(nn)}:{Kb(nn)+3}], v[{8+4*nt}:{11+4*nt}], 0"
        sm0 = f"    v_smfmac_f32_32x32x32_bf16 v[{80+16*t}:{95+16*t}], v[{Vb(n,0)}:{Vb(n,0)+3}], v[{X}:{X+7}], v5"
        rv0 = rv1 = rk = wt = None
        if pt == ntile - 1:
            off = ((pn + 2) % nblk)
            rv0 = f"    ds_read_b128 v[{Vb(pn,0)}:{Vb(pn,0)+3}], v7 offset:{off*1088}"
            rv1 = f"    ds_read_b128 v[{Vb(pn,1)}:{Vb(pn,1)+3}], v7 offset:{off*1088+544}"
        if nt == ntile - 1:
            off = ((nn + 2) % nblk)
            rk = f"    ds_read_b128 v[{Kb(nn)}:{Kb(nn)+3}], v6 offset:{off*1024}"
        def A(x):
            if x: L.append(x)
        nop = "    s_nop 0"
        if variant == "burst":
            A(sm0p); A(rv0 or nop); A(sm1); A(rv1);
            if nt == 0: A("    s_waitcnt lgkmcnt(2)" if pt == ntile - 1 else "    s_waitcnt lgkmcnt(0)")
            A(qk); A(rk)
            for i in range(16): e(i)
        elif variant == "burst_nr":
            A(sm0p); A(nop); A(sm1); A(qk)
            for i in range(16): e(i)
        elif variant == "half":
            e(0); e(1); A(sm1); A(rv0); A(rv1)
            if nt == 0: A("    s_waitcnt lgkmcnt(2)" if pt == ntile - 1 else "    s_waitcnt lgkmcnt(0)")
            A(qk); A(rk)
            for i in range(2, 10): e(i)
            A(sm0)
            for i in range(10, 16): e(i)
        elif variant == "base":
            e(0); e(1); A(sm1); A(rv0); A(rv1); e(2); e(3); e(4); e(5)
            if nt == 0: A("    s_waitcnt lgkmcnt(2)" if pt == ntile - 1 else "    s_waitcnt lgkmcnt(0)")
            A(qk); A(rk); e(6); e(7); e(8); e(9); A(sm0)
            for i in range(10, 16): e(i)
        elif variant == "base_w":
            e(0); e(1); A(sm1)
            if nt == 0: A("    s_waitcnt lgkmcnt(0)")
            A(rv0); A(rv1); e(2); e(3); e(4); e(5)
            A(qk); A(rk); e(6); e(7); e(8); e(9); A(sm0)
            for i in range(10, 16): e(i)
        elif variant == "base_1each":
            e(0); e(1); A(sm1); A(rv1); e(2); e(3); e(4); e(5)
            A(qk); A(rk); e(6); e(7); e(8); e(9); A(sm0); A(rv0)
            for i in range(10, 16): e(i)
        elif variant == "base_nop":
            e(0); e(1); A(sm1); A(nop); e(2); e(3); e(4); e(5)
            A(qk); A(nop); e(6); e(7); e(8); e(9); A(sm0); A(nop)
            for i in range(10, 16): e(i)
        elif variant == "base_salu":
            sal = "    s_add_u32 s40, s40, 1"
            e(0); e(1); A(sm1); A(sal); e(2); e(3); e(4); e(5)
            A(qk); A(sal); e(6); e(7); e(8); e(9); A(sm0); A(sal)
            for i in range(10, 16): e(i)
        elif variant == "exp_salu":
            sal = "    s_add_u32 s40, s40, 1"
            e(0); e(1); A(sm1); e(2); A(sal); e(3); e(4); e(5)
            A(qk); e(6); A(sal); e(7); e(8); e(9); A(sm0); e(10); A(sal)
            for i in range(11, 16): e(i)
    return "\n".join(L)

for ntile in (1, 2):
    for nblk in (8,):
        for v in ("base", "base_w", "base_1each", "base_nop", "base_salu", "exp_salu", "half", "burst", "burst_nr"):
            name = f"at_t{ntile}_b{nblk}_{v}"
            T.append(dict(name=name, body=body(ntile, nblk, v), pre=mb3.pre(ntile).replace("NAME", name), iters=64, unroll=1, lds=140*1024, div=nblk*ntile, blocks=(256, 512, 768, 1024)))
if __name__ == "__main__":
    build(T, "mb5")
    if os.path.exists("/dev/kfd"):
        for t in T: t['unroll'] = t['div']
        run(T, "mb5")
```
